```python
import torch

def _softmax(x, axis=-1):
    return torch.softmax(x, dim=axis)
def _gelu(x):
    return torch.nn.functional.gelu(x, approximate="tanh")
def _silu(x):
    return torch.nn.functional.silu(x)
def _sigmoid(x):
    return torch.sigmoid(x)
def _layernorm(x, axis=-1, eps=1e-5):
    m = x.mean(dim=axis, keepdim=True)
    v = x.var(dim=axis, keepdim=True, unbiased=False)
    return (x - m) / torch.sqrt(v + eps)
def _scatter_add(tgt, idx, src, axis=0):
    return tgt.clone().index_add_(axis, idx, src)
def _segment_sum(src, seg, n):
    out = torch.zeros((n,) + src.shape[1:], dtype=src.dtype)
    return out.index_add_(0, seg, src)
def _pad(x, pw):
    flat = tuple(v for pair in reversed(pw) for v in pair)
    return torch.nn.functional.pad(x, flat)

kernel_name = 'standalone__linear_kernel_performer__prompt'

def setup_inputs():

    _w = (lambda a: (lambda t: t.to(torch.bfloat16) if t.is_floating_point() else t)(torch.as_tensor(a)))
    B, H, S, D = 1, 16, 2048, 256
    M = D
    return {
        "q": _w((lambda *s: torch.randn(*s, dtype=torch.bfloat16) * 0.05)(B, H, S, D)),
        "k": _w((lambda *s: torch.randn(*s, dtype=torch.bfloat16) * 0.4)(B, H, S, D)),
        "v": _w((lambda *s: torch.randn(*s, dtype=torch.bfloat16) * 0.4)(B, H, S, D)),
        "proj": _w((lambda *s: torch.randn(*s, dtype=torch.bfloat16) * 0.4)(M, D)),
    }

def reference(q, k, v, proj):
    B, H, S, D = q.shape
    M = proj.shape[0]
    scale = D ** -0.25
    qs = q * scale
    ks = k * scale
    qw = torch.einsum("bhsd,md->bhsm", qs, proj)
    kw = torch.einsum("bhsd,md->bhsm", ks, proj)
    qn = torch.einsum("bhsd,bhsd->bhs", qs, qs)[..., None] * 0.5
    kn = torch.einsum("bhsd,bhsd->bhs", ks, ks)[..., None] * 0.5
    inv_sqrt_m = M ** -0.5
    phi_q = torch.exp(qw - qn) * inv_sqrt_m
    phi_k = torch.exp(kw - kn) * inv_sqrt_m
    kv = torch.einsum("bhsm,bhsd->bhmd", phi_k, v)
    ksum = torch.einsum("bhsm->bhm", phi_k)
    num = torch.einsum("bhsm,bhmd->bhsd", phi_q, kv)
    den = torch.einsum("bhsm,bhm->bhs", phi_q, ksum)[..., None] + 1e-6
    return num / den
```

```python
import struct
NAME = "standalone__linear_kernel_performer__prompt"
HEADER = """; Kernarg layout for this problem (56 bytes, ptrs only, base s[0:1]):
"""
def f2u(x):
    return struct.unpack("<I", struct.pack("<f", x))[0]
def v(a, n=1):
    return "v%d" % a if n == 1 else "v[%d:%d]" % (a, a + n - 1)
def s(a, n=1):
    return "s%d" % a if n == 1 else "s[%d:%d]" % (a, a + n - 1)

class Asm:
    def __init__(self):
        self.lines = []
    def __call__(self, txt):
        for l in txt.split("\n"):
            l = l.strip()
            if l:
                self.lines.append(l if l.endswith(":") or l.startswith(".") else "    " + l)
    def c(self, txt):
        self.lines.append("    ; " + txt)
    def label(self, name):
        self.lines.append(name + ":")
    def text(self):
        return "\n".join(self.lines) + "\n"

def kernel_begin(a, name):
    a(".globl %s" % name)
    a(".p2align 8")
    a(".type %s,@function" % name)
    a.label(name)

def kernel_desc(name, vgpr=256, sgpr=102, accum=None):
    accum = accum or ((min(vgpr, 256) + 3) // 4 * 4)
    return """.amdhsa_kernel %s
  .amdhsa_next_free_vgpr %d
  .amdhsa_next_free_sgpr %d
  .amdhsa_accum_offset %d
  .amdhsa_group_segment_fixed_size 0
  .amdhsa_kernarg_size 56
  .amdhsa_user_sgpr_count 2
  .amdhsa_user_sgpr_kernarg_segment_ptr 1
  .amdhsa_system_sgpr_workgroup_id_x 1
  .amdhsa_float_denorm_mode_32 3
  .amdhsa_float_denorm_mode_16_64 3
.end_amdhsa_kernel
""" % (name, vgpr, sgpr, accum)
```

```python
import sys, math
from common import *
NT = " nt" if "--nt" in sys.argv else ""
LOG2E = math.log2(math.e)
C1 = f2u(0.25 * LOG2E)
C2 = f2u(-LOG2E / 32.0)
TILE = 16896
NSLOT = 9
MISC = NSLOT * TILE
KN_OFF = MISC
QN_OFF = MISC + 1024
KS_OFF = MISC + 1536
DEN_OFF = MISC + 2048
LDS_BYTES = MISC + 2560
WS_KVF = 0
WS_KS = 2 << 20

sWAVE, sHEAD, sC, sP, sMU, sW = 3, 40, 41, 42, 43, 44
rK, rV, rQ, rP, rO, rOH, rW = 8+12, 8+16, 8+20, 48, 52, 56, 60
sT0, sT1, sT2, sT3 = 32, 33, 34, 35
sC1, sC2, sONES = 36, 37, 38

def srd(a, r, ptr, off_sgpr, size):
    if off_sgpr is None:
        a("s_mov_b32 %s, %s" % (s(r), s(ptr)))
        a("s_mov_b32 %s, %s" % (s(r + 1), s(ptr + 1)))
    else:
        a("s_add_u32 %s, %s, %s" % (s(r), s(ptr), s(off_sgpr)))
        a("s_addc_u32 %s, %s, 0" % (s(r + 1), s(ptr + 1)))
    a("s_mov_b32 %s, 0x%x" % (s(r + 2), size))
    a("s_mov_b32 %s, 0x20000" % s(r + 3))

def prologue(a, endlabel):
    a("s_cmp_ge_u32 s2, 256")
    a("s_cbranch_scc1 %s" % endlabel)
    a("s_load_dwordx8 s[4:11], s[0:1], 0")
    a("s_load_dwordx4 s[12:15], s[0:1], 32")
    a("s_load_dwordx2 s[16:17], s[0:1], 48")
    a("v_lshrrev_b32 v1, 6, v0")
    a("v_and_b32 v0, 63, v0")
    a("v_readfirstlane_b32 %s, v1" % s(sWAVE))
    a("s_and_b32 %s, s2, 7" % s(sT0))
    a("s_lshl_b32 %s, %s, 1" % (s(sT0), s(sT0)))
    a("s_bfe_u32 %s, s2, 0x10003" % s(sT1))
    a("s_or_b32 %s, %s, %s" % (s(sHEAD), s(sT0), s(sT1)))
    a("s_lshr_b32 %s, s2, 4" % s(sC))
    a("s_lshr_b32 %s, %s, 1" % (s(sP), s(sC)))
    a("s_and_b32 %s, %s, 1" % (s(sMU), s(sC)))
    a("s_and_b32 %s, %s, 3" % (s(sW), s(sWAVE)))
    a("s_lshl_b32 %s, %s, 20" % (s(sT0), s(sHEAD)))
    a("s_lshl_b32 %s, %s, 17" % (s(sT1), s(sP)))
    a("s_add_u32 %s, %s, %s" % (s(sT1), s(sT1), s(sT0)))
    a("s_lshl_b32 %s, %s, 16" % (s(sT2), s(sC)))
    a("s_add_u32 %s, %s, %s" % (s(sT2), s(sT2), s(sT0)))
    a("s_mov_b32 %s, 0x%x" % (s(sC1), C1))
    a("s_mov_b32 %s, 0x%x" % (s(sC2), C2))
    a("s_mov_b32 %s, 0x3f803f80" % s(sONES))
    a("s_waitcnt lgkmcnt(0)")
    srd(a, rK, 6, sT1, 131072)
    srd(a, rV, 8, sT1, 131072)
    srd(a, rQ, 4, sT2, 65536)
    srd(a, rP, 10, None, 131072)
    srd(a, rO, 12, sT2, 65536)
    srd(a, rOH, 12, sT0, 1 << 20)
    srd(a, rW, 16, None, 4 << 20)

hOFFT = 1
hOFFV = 2
hRD0, hRD1 = 6, 7
hWR = 8
hD = 12
hACC = 28

def h_setup(a):
    a.c("tile DMA offset: q*512 + ((l&31)^q)*16 + w*4096")
    a("v_lshrrev_b32 v9, 5, v0")
    a("v_and_b32 v10, 31, v0")
    a("v_xor_b32 v10, v10, v9")
    a("v_lshlrev_b32 v10, 4, v10")
    a("v_lshl_add_u32 v10, v9, 9, v10")
    a("s_lshl_b32 %s, %s, 12" % (s(sT0), s(sW)))
    a("v_add_u32 %s, %s, v10" % (v(hOFFT), s(sT0)))
    a.c("V unit DMA offset: row=(l>>3), seg=(l&7)^((row&2)<<1); (w*32+row)*512 + seg*16 + i*3072")
    a("v_lshrrev_b32 v9, 3, v0")
    a("v_and_b32 v10, 2, v9")
    a("v_lshlrev_b32 v10, 1, v10")
    a("v_and_b32 v11, 7, v0")
    a("v_xor_b32 v10, v10, v11")
    a("v_lshlrev_b32 v10, 4, v10")
    a("v_lshl_add_u32 v10, v9, 9, v10")
    a("s_lshl_b32 %s, %s, 14" % (s(sT0), s(sW)))
    a("v_add_u32 %s, %s, v10" % (v(hOFFV), s(sT0)))
    for i in range(1, 4):
        a("v_add_u32 %s, 0x%x, %s" % (v(hOFFV + i), 3072 * i, v(hOFFV)))
    a.c("norm read address: row=l>>3; u=4w+(row>>1); q=row&1; chunk0=(seg+8*((row>>1)&1)-2*(row>>1))&15")
    a("v_lshrrev_b32 v9, 4, v0")
    a("v_and_b32 v10, 1, v9")
    a("v_lshlrev_b32 v10, 3, v10")
    a("v_add_u32 v10, v10, v11")
    a("v_lshlrev_b32 v12, 1, v9")
    a("v_sub_u32 v10, v10, v12")
    a("v_and_b32 v10, 15, v10")
    a("v_mul_u32_u24 v12, 1056, v9")
    a("v_bfe_u32 v13, v0, 3, 1")
    a("v_lshl_add_u32 v12, v13, 9, v12")
    a("s_mul_i32 %s, %s, %d" % (s(sT0), s(sW), 4 * 1056))
    a("v_add_u32 v12, %s, v12" % s(sT0))
    a("v_lshl_add_u32 %s, v10, 4, v12" % v(hRD0))
    a("v_xor_b32 v10, 8, v10")
    a("v_lshl_add_u32 %s, v10, 4, v12" % v(hRD1))
    a.c("norm write address: (8w + row)*4")
    a("v_lshrrev_b32 v9, 3, v0")
    a("s_lshl_b32 %s, %s, 3" % (s(sT0), s(sW)))
    a("v_add_u32 v9, %s, v9" % s(sT0))
    a("v_lshlrev_b32 %s, 2, v9" % v(hWR))
    a("v_add_u32 %s, 0x%x, %s" % (v(hWR), MISC, v(hWR)))

def h_dma_tile(a, srdreg, memoff, slot, nt=NT):
    a("s_mul_i32 %s, %s, %d" % (s(sT0), s(sW), 4 * 1056))
    a("s_add_u32 m0, %s, %d" % (s(sT0), slot * TILE))
    if isinstance(memoff, int):
        a("s_mov_b32 %s, 0x%x" % (s(sT1), memoff))
        so = s(sT1)
    else:
        so = memoff
        a("s_nop 0")
    for i in range(4):
        if i:
            a("s_add_u32 m0, m0, 32")
            a("s_nop 0")
        a("buffer_load_dwordx4 %s, %s, %s offen offset:%d%s lds" % (v(hOFFT), s(srdreg, 4), so, 1024 * i, nt))

def h_dma_vunit(a, sl, half, slot):
    a("s_lshl_b32 %s, %s, 12" % (s(sT0), s(sW)))
    a("s_add_u32 m0, %s, %d" % (s(sT0), slot * TILE))
    a("s_mov_b32 %s, 0x%x" % (s(sT1), half * 65536 + sl * 128))
    for i in range(4):
        a("buffer_load_dwordx4 %s, %s, %s offen offset:%d%s lds" % (v(hOFFV + i), s(rV, 4), s(sT1), 1024 * i, NT))

def h_norm(a, slot, ldsoff):
    base = slot * TILE
    a("v_add_u32 v9, 0x%x, %s" % (base, v(hRD0)))
    a("v_add_u32 v10, 0x%x, %s" % (base, v(hRD1)))
    a("ds_read_b128 %s, v9" % v(hD, 4))
    a("ds_read_b128 %s, v10" % v(hD + 4, 4))
    a("ds_read_b128 %s, v9 offset:256" % v(hD + 8, 4))
    a("ds_read_b128 %s, v10 offset:256" % v(hD + 12, 4))
    a("v_mov_b32 %s, 0" % v(hACC))
    a("v_mov_b32 %s, 0" % v(hACC + 1))
    a("s_waitcnt lgkmcnt(0)")
    for i in range(16):
        a("v_dot2c_f32_bf16 %s, %s, %s" % (v(hACC + (i & 1)), v(hD + i), v(hD + i)))
    a("s_nop 3")
    a("v_add_f32 %s, %s, %s" % (v(hACC), v(hACC), v(hACC + 1)))
    for dpp in ("quad_perm:[1,0,3,2]", "quad_perm:[2,3,0,1]", "row_half_mirror"):
        a("s_nop 1")
        a("v_add_f32_dpp %s, %s, %s %s row_mask:0xf bank_mask:0xf" % (v(hACC), v(hACC), v(hACC), dpp))
    a("v_fma_f32 %s, %s, %s, -4.0" % (v(hACC), v(hACC), s(sC2)))
    a("ds_write_b32 %s, %s offset:%d" % (v(hWR), v(hACC), ldsoff))

cFA = 1
cT = 2
cVA = 8
cKNA = 10
cLIN = 11
cKS = 12
cPA = 16
cPHI = 80
cACC = 144
cKN = 176
cFR = 192

def c_setup(a):
    a.c("tile frag address: u=(l&31)>>1, q=l&1, h=l>>5: u*1056 + q*512 + (h^q)*16")
    a("v_bfe_u32 v2, v0, 1, 4")
    a("v_mul_u32_u24 v2, 1056, v2")
    a("v_and_b32 v3, 1, v0")
    a("v_lshl_add_u32 v2, v3, 9, v2")
    a("v_lshrrev_b32 v4, 5, v0")
    a("v_xor_b32 v3, v3, v4")
    a("v_lshl_add_u32 %s, v3, 4, v2" % v(cFA))
    a.c("V tr address: r'=(l&15)>>2: (4h+r')*128 + ((b^(r'>>1))*64) + 32*((l>>4)&1) + 8*(l&3)")
    a("v_bfe_u32 v2, v0, 2, 2")
    a("v_lshl_add_u32 v3, v4, 2, v2")
    a("v_lshlrev_b32 v3, 7, v3")
    a("v_bfe_u32 v5, v0, 4, 1")
    a("v_lshl_add_u32 v3, v5, 5, v3")
    a("v_and_b32 v5, 3, v0")
    a("v_lshl_add_u32 v3, v5, 3, v3")
    a("v_lshrrev_b32 v2, 1, v2")
    a("v_lshl_add_u32 %s, v2, 6, v3" % v(cVA))
    a("v_xor_b32 %s, 64, %s" % (v(cVA + 1), v(cVA)))
    a("v_lshlrev_b32 %s, 4, v4" % v(cKNA))
    a("v_add_u32 %s, 0x%x, %s" % (v(cKNA), MISC, v(cKNA)))
    a("v_lshlrev_b32 %s, 4, v0" % v(cLIN))

def c_read_tile_frags(a, dst, slot_expr_sgpr=None, slot=None):
    if slot is not None:
        a("v_add_u32 v2, 0x%x, %s" % (slot * TILE, v(cFA)))
    else:
        a("v_add_u32 v2, %s, %s" % (slot_expr_sgpr, v(cFA)))
    for t in range(16):
        a("ds_read_b128 %s, v2 offset:%d" % (v(dst + 4 * t, 4), 32 * t))

def kern_k(a):
    n = "kphase_kernel"
    kernel_begin(a, n)
    prologue(a, "L_k_end")
    a("s_cmp_ge_u32 %s, 4" % s(sWAVE))
    a("s_cbranch_scc1 L_k_helper")
    c_setup(a)
    a("s_barrier")
    a("s_mul_i32 %s, %s, %d" % (s(sT0), s(sW), TILE))
    c_read_tile_frags(a, cPA, slot_expr_sgpr=s(sT0))
    a("s_waitcnt lgkmcnt(0)")
    a("s_barrier")
    for i in range(8):
        a("s_barrier")
        for g in range(4):
            a("ds_read_b128 %s, %s offset:%d" % (v(cKN + 4 * g, 4), v(cKNA), (32 * i + 8 * g) * 4))
        c_read_tile_frags(a, cFR, slot=i)
        a("s_waitcnt lgkmcnt(0)")
        for t in range(16):
            a("v_mfma_f32_32x32x16_bf16 %s, %s, %s, %s" % (v(cACC, 16), v(cFR + 4 * t, 4), v(cPA + 4 * t, 4), "0" if t == 0 else v(cACC, 16)))
        a("s_nop 15")
        for r in range(16):
            a("v_fmac_f32 %s, %s, %s" % (v(cKN + r), s(sC1), v(cACC + r)))
        for r in range(16):
            a("v_exp_f32 %s, %s" % (v(cKN + r), v(cKN + r)))
        a("s_nop 0")
        for r in range(8):
            a("v_cvt_pk_bf16_f32 %s, %s, %s" % (v(cPHI + 8 * i + r), v(cKN + 2 * r), v(cKN + 2 * r + 1)))
    a("s_barrier")
    a("v_mov_b32 %s, 0" % v(cKS))
    a("s_nop 1")
    for r in range(64):
        a("v_dot2c_f32_bf16 %s, %s, %s" % (v(cKS), s(sONES), v(cPHI + r)))
    a("s_lshl_b32 %s, %s, 4" % (s(sT0), s(sHEAD)))
    a("s_add_u32 %s, %s, %s" % (s(sT0), s(sT0), s(sC)))
    a("s_lshl_b32 %s, %s, 2" % (s(sT0), s(sT0)))
    a("s_add_u32 %s, %s, %s" % (s(sT0), s(sT0), s(sW)))
    a("s_lshl_b32 %s, %s, 8" % (s(sT0), s(sT0)))
    a("s_add_u32 %s, %s, 0x%x" % (s(sT0), s(sT0), WS_KS))
    a("v_lshlrev_b32 v2, 2, v0")
    a("s_nop 3")
    a("buffer_store_dword %s, v2, %s, %s offen" % (v(cKS), s(rW, 4), s(sT0)))
    a("s_barrier")
    for sl in range(4):
        for half in range(2):
            slot = 2 * sl + half
            a("v_add_u32 v2, 0x%x, %s" % (slot * TILE, v(cVA)))
            a("v_add_u32 v3, 0x%x, %s" % (slot * TILE, v(cVA + 1)))
            for tt in range(8):
                for b in range(2):
                    f = cFR + (tt * 2 + b) * 4
                    a("ds_read_b64_tr_b16 %s, %s offset:%d" % (v(f, 2), v(2 + b), tt * 2048))
                    a("ds_read_b64_tr_b16 %s, %s offset:%d" % (v(f + 2, 2), v(2 + b), tt * 2048 + 1024))
                if tt % 2 == 1:
                    a("s_waitcnt lgkmcnt(0)")
            for tt in range(8):
                t = half * 8 + tt
                for b in range(2):
                    f = cFR + (tt * 2 + b) * 4
                    acc = v(cACC + 16 * b, 16)
                    a("v_mfma_f32_32x32x16_bf16 %s, %s, %s, %s" % (acc, v(cPHI + 4 * t, 4), v(f, 4), "0" if t == 0 else acc))
        a("s_nop 15")
        for b in range(2):
            for r in range(8):
                a("v_cvt_pk_bf16_f32 %s, %s, %s" % (v(cKN + 8 * b + r), v(cACC + 16 * b + 2 * r), v(cACC + 16 * b + 2 * r + 1)))
        a("s_lshl_b32 %s, %s, 12" % (s(sT0), s(sW)))
        a("s_add_u32 %s, %s, %d" % (s(sT0), s(sT0), sl * 16384))
        for b in range(2):
            for tl in range(2):
                a("buffer_store_dwordx4 %s, %s, %s, %s offen offset:%d" % (v(cKN + 8 * b + 4 * tl, 4), v(cLIN), s(rO, 4), s(sT0), tl * 2048 + b * 1024))
        a("s_nop 1")
    a("s_endpgm")
    a.label("L_k_helper")
    h_setup(a)
    for w in range(4):
        a("s_lshl_b32 %s, %s, 16" % (s(sT2), s(sMU)))
        a("s_add_u32 %s, %s, %d" % (s(sT2), s(sT2), w * 16384))
        h_dma_tile(a, rP, s(sT2), w, nt="")
    a("s_waitcnt vmcnt(0)")
    a("s_barrier")
    a("s_barrier")
    for i in range(8):
        h_dma_tile(a, rK, i * 16384, i)
    for i in range(8):
        a("s_waitcnt vmcnt(%d)" % (4 * (7 - i)))
        h_norm(a, i, (KN_OFF - MISC) + i * 128)
        a("s_waitcnt lgkmcnt(0)")
        a("s_barrier")
    a("s_barrier")
    for sl in range(4):
        for half in range(2):
            h_dma_vunit(a, sl, half, 2 * sl + half)
    a("s_waitcnt vmcnt(0)")
    a("s_barrier")
    a.label("L_k_end")
    a("s_endpgm")
    return n

def build_ident(a, A0, A1, t0):
    a("v_bfe_u32 %s, v0, 3, 1" % v(t0))
    a("v_lshlrev_b32 %s, 2, %s" % (v(t0), v(t0)))
    a("v_and_b32 %s, 3, v0" % v(t0 + 1))
    a("v_add_u32 %s, %s, %s" % (v(t0), v(t0), v(t0 + 1)))
    a("v_and_b32 %s, 1, %s" % (v(t0 + 1), v(t0)))
    a("v_lshlrev_b32 %s, 4, %s" % (v(t0 + 1), v(t0 + 1)))
    a("v_mov_b32 %s, 0x3f80" % v(t0 + 2))
    a("v_lshlrev_b32 %s, %s, %s" % (v(t0 + 2), v(t0 + 1), v(t0 + 2)))
    a("v_lshrrev_b32 %s, 1, %s" % (v(t0), v(t0)))
    a("v_bfe_u32 %s, v0, 2, 1" % v(t0 + 1))
    a("v_lshrrev_b32 %s, 5, v0" % v(t0 + 3))
    a("v_xor_b32 %s, %s, %s" % (v(t0 + 1), v(t0 + 1), v(t0 + 3)))
    a("v_lshl_add_u32 %s, %s, 3, %s" % (v(t0), v(t0 + 1), v(t0)))
    a("v_bfe_u32 %s, v0, 4, 1" % v(t0 + 1))
    a("v_lshl_add_u32 %s, %s, 2, %s" % (v(t0), v(t0 + 1), v(t0)))
    for r in range(8):
        a("v_cmp_eq_u32 vcc, %d, %s" % (r, v(t0)))
        a("s_nop 1")
        a("v_cndmask_b32 %s, 0, %s, vcc" % (v((A0 + r) if r < 4 else (A1 + r - 4)), v(t0 + 2)))

def kern_r(a):
    n = "reduce_kernel"
    kernel_begin(a, n)
    prologue(a, "L_r_end")
    A0, A1, ACC, D = 8, 12, 16, 32
    build_ident(a, A0, A1, 2)
    a("v_lshlrev_b32 v1, 4, v0")
    a("s_lshr_b32 %s, %s, 3" % (s(sT0), s(sC)))
    a("s_lshl_b32 %s, %s, 16" % (s(sT0), s(sT0)))
    a("s_and_b32 %s, %s, 7" % (s(sT1), s(sC)))
    a("s_lshl_b32 %s, %s, 11" % (s(sT1), s(sT1)))
    a("s_add_u32 %s, %s, %s" % (s(sT0), s(sT0), s(sT1)))
    a("s_lshl_b32 %s, %s, 14" % (s(sT1), s(sW)))
    a("s_add_u32 %s, %s, %s" % (s(sT0), s(sT0), s(sT1)))
    for p in range(8):
        for b in range(2):
            a("buffer_load_dwordx4 %s, v1, %s, %s offen offset:%d" % (v(D + (2 * p + b) * 4, 4), s(rOH, 4), s(sT0), b * 1024))
        a("s_add_u32 %s, %s, 0x20000" % (s(sT0), s(sT0)))
    a("s_waitcnt vmcnt(0)")
    for p in range(8):
        for b in range(2):
            a("v_mfma_f32_32x32x16_bf16 %s, %s, %s, %s" % (v(ACC, 16), v(A1 if b else A0, 4), v(D + (2 * p + b) * 4, 4), "0" if p == 0 and b == 0 else v(ACC, 16)))
    a("v_and_b32 v2, 1, v0")
    a("v_lshlrev_b32 v2, 10, v2")
    a("v_bfe_u32 v3, v0, 1, 4")
    a("v_lshl_add_u32 v2, v3, 4, v2")
    a("v_lshrrev_b32 v3, 5, v0")
    a("v_lshl_add_u32 v2, v3, 9, v2")
    a("s_lshl_b32 %s, %s, 17" % (s(sT0), s(sHEAD)))
    a("s_lshl_b32 %s, %s, 15" % (s(sT1), s(sW)))
    a("s_add_u32 %s, %s, %s" % (s(sT0), s(sT0), s(sT1)))
    a("s_lshl_b32 %s, %s, 11" % (s(sT1), s(sC)))
    a("s_add_u32 %s, %s, %s" % (s(sT0), s(sT0), s(sT1)))
    a("s_nop 15")
    for r in range(8):
        a("v_cvt_pk_bf16_f32 %s, %s, %s" % (v(D + r), v(ACC + 2 * r), v(ACC + 2 * r + 1)))
    for b in range(2):
        a("buffer_store_dwordx4 %s, v2, %s, %s offen offset:%d" % (v(D + 4 * b, 4), s(rW, 4), s(sT0), b * 256))
    a.label("L_r_end")
    a("s_endpgm")
    return n

def kern_q(a):
    n = "qphase_kernel"
    kernel_begin(a, n)
    prologue(a, "L_q_end")
    a("s_cmp_ge_u32 %s, 4" % s(sWAVE))
    a("s_cbranch_scc1 L_q_helper")
    c_setup(a)
    a("s_barrier")
    a("s_lshl_b32 %s, %s, 2" % (s(sT2), s(sMU)))
    a("s_add_u32 %s, %s, %s" % (s(sT2), s(sT2), s(sW)))
    a("s_xor_b32 %s, %s, 4" % (s(sT3), s(sT2)))
    a("s_mul_i32 %s, %s, %d" % (s(sT0), s(sT2), TILE))
    c_read_tile_frags(a, cPA, slot_expr_sgpr=s(sT0))
    a("s_waitcnt lgkmcnt(0)")
    a("s_mul_i32 %s, %s, %d" % (s(sT0), s(sT3), TILE))
    c_read_tile_frags(a, cPHI, slot_expr_sgpr=s(sT0))
    a("s_waitcnt lgkmcnt(0)")
    a("s_barrier")
    a("s_barrier")
    a("s_lshl_b32 %s, %s, 11" % (s(sT2), s(sT2)))
    a("s_lshl_b32 %s, %s, 11" % (s(sT3), s(sT3)))
    a("v_add_u32 v4, %s, %s" % (s(sT2), v(cLIN)))
    a("v_add_u32 v5, %s, %s" % (s(sT3), v(cLIN)))
    a("v_add_u32 v4, 0x%x, v4" % (4 * TILE))
    a("v_add_u32 v5, 0x%x, v5" % (4 * TILE))
    a("v_and_b32 v6, 31, v0")
    a("v_lshlrev_b32 v6, 2, v6")
    a("v_add_u32 v6, 0x%x, v6" % QN_OFF)
    for sb in range(4):
        a("ds_read_b32 v7, v6 offset:%d" % (sb * 128))
        c_read_tile_frags(a, cFR, slot=sb)
        a("s_waitcnt lgkmcnt(0)")
        for t in range(16):
            for x, P in enumerate((cPA, cPHI)):
                acc = v(cACC + 16 * x, 16)
                a("v_mfma_f32_32x32x16_bf16 %s, %s, %s, %s" % (acc, v(P + 4 * t, 4), v(cFR + 4 * t, 4), "0" if t == 0 else acc))
        a("s_nop 15")
        for r in range(32):
            a("v_fma_f32 %s, %s, %s, v7" % (v(cACC + r), v(cACC + r), s(sC1)))
        for r in range(32):
            a("v_exp_f32 %s, %s" % (v(cACC + r), v(cACC + r)))
        a("s_nop 0")
        for r in range(16):
            a("v_cvt_pk_bf16_f32 %s, %s, %s" % (v(cKN + r), v(cACC + 2 * r), v(cACC + 2 * r + 1)))
        for x in range(2):
            for tl in range(2):
                a("ds_write_b128 %s, %s offset:%d" % (v(4 + x), v(cKN + 8 * x + 4 * tl, 4), sb * TILE + tl * 1024))
        a("s_waitcnt lgkmcnt(0)")
    a("s_lshl_b32 %s, %s, 17" % (s(sT0), s(sHEAD)))
    a("s_lshl_b32 %s, %s, 15" % (s(sT1), s(sW)))
    a("s_add_u32 %s, %s, %s" % (s(sT0), s(sT0), s(sT1)))
    for i in range(32):
        a("buffer_load_dwordx4 %s, %s, %s, %s offen offset:%d" % (v(cPA + 4 * i, 4), v(cLIN), s(rW, 4), s(sT0), (i & 3) * 1024))
        if i & 3 == 3:
            a("s_add_u32 %s, %s, 4096" % (s(sT0), s(sT0)))
    a("s_barrier")
    a("s_barrier")
    a("s_waitcnt vmcnt(0)")
    a("v_lshrrev_b32 v4, 5, v0")
    a("v_lshlrev_b32 v4, 11, v4")
    a("v_and_b32 v5, 31, v0")
    a("v_lshl_add_u32 v4, v5, 2, v4")
    a("s_lshl_b32 %s, %s, 7" % (s(sT0), s(sW)))
    a("v_add_u32 v4, %s, v4" % s(sT0))
    a("v_add_u32 v2, 0x%x, %s" % (4 * TILE, v(cLIN)))
    for sb in range(4):
        for g in range(4):
            a("ds_read_b128 %s, %s offset:%d" % (v(cKN + 4 * g, 4), v(cKNA), (DEN_OFF - MISC) + (32 * sb + 8 * g) * 4))
        a("v_add_u32 v3, 0x%x, v2" % (sb * TILE))
        for t in range(16):
            a("ds_read_b128 %s, v3 offset:%d" % (v(cFR + 4 * t, 4), t * 1024))
        a("s_waitcnt lgkmcnt(0)")
        for t in range(16):
            for b in range(2):
                acc = v(cACC + 16 * b, 16)
                a("v_mfma_f32_32x32x16_bf16 %s, %s, %s, %s" % (acc, v(cFR + 4 * t, 4), v(cPA + (2 * t + b) * 4, 4), "0" if t == 0 else acc))
        a("s_nop 15")
        for r in range(16):
            for b in range(2):
                a("v_mul_f32 %s, %s, %s" % (v(cACC + 16 * b + r), v(cACC + 16 * b + r), v(cKN + r)))
        for r in range(16):
            a("v_cvt_pk_bf16_f32 %s, %s, %s" % (v(cKN + r), v(cACC + r), v(cACC + 16 + r)))
        for r in range(16):
            if r % 4 == 0:
                a("s_mov_b32 %s, %d" % (s(sT0), sb * 16384 + (r >> 2) * 4096))
            a("buffer_store_dword %s, v4, %s, %s offen offset:%d sc1" % (v(cKN + r), s(rO, 4), s(sT0), (r & 3) * 512))
        a("s_waitcnt vmcnt(0)")
    a("s_endpgm")
    a.label("L_q_helper")
    h_setup(a)
    for mb in range(8):
        h_dma_tile(a, rP, mb * 16384, mb, nt="")
    a("s_waitcnt vmcnt(0)")
    a("s_barrier")
    a("s_barrier")
    for sb in range(4):
        h_dma_tile(a, rQ, sb * 16384, sb)
    a("v_lshrrev_b32 v9, 5, v0")
    a("v_lshlrev_b32 v9, 8, v9")
    a("v_and_b32 v10, 31, v0")
    a("v_lshl_add_u32 v9, v10, 2, v9")
    a("s_lshl_b32 %s, %s, 14" % (s(sT0), s(sHEAD)))
    a("s_lshl_b32 %s, %s, 9" % (s(sT1), s(sW)))
    a("s_add_u32 %s, %s, %s" % (s(sT0), s(sT0), s(sT1)))
    a("s_add_u32 %s, %s, 0x%x" % (s(sT0), s(sT0), WS_KS))
    for p in range(8):
        for hh in range(2):
            a("buffer_load_dword %s, v9, %s, %s offen offset:%d" % (v(32 + 2 * p + hh), s(rW, 4), s(sT0), hh * 128))
        a("s_add_u32 %s, %s, 2048" % (s(sT0), s(sT0)))
    a("s_waitcnt vmcnt(0)")
    for i in range(1, 16):
        a("v_add_f32 v32, v32, %s" % v(32 + i))
    a("v_cvt_pk_bf16_f32 v32, v32, v32")
    a("v_lshrrev_b32 v9, 4, v0")
    a("v_lshlrev_b32 v9, 5, v9")
    a("v_bfe_u32 v10, v0, 2, 1")
    a("v_lshl_add_u32 v9, v10, 4, v9")
    a("v_bfe_u32 v10, v0, 3, 1")
    a("v_lshl_add_u32 v9, v10, 3, v9")
    a("v_and_b32 v10, 3, v0")
    a("v_lshl_add_u32 v9, v10, 1, v9")
    a("s_lshl_b32 %s, %s, 7" % (s(sT0), s(sW)))
    a("s_add_u32 %s, %s, 0x%x" % (s(sT0), s(sT0), KS_OFF))
    a("v_add_u32 v9, %s, v9" % s(sT0))
    a("ds_write_b16 v9, v32")
    for sb in range(4):
        h_norm(a, sb, (QN_OFF - MISC) + sb * 128)
    a("s_waitcnt lgkmcnt(0)")
    a("s_barrier")
    a("s_barrier")
    a("s_mul_i32 %s, %s, %d" % (s(sT0), s(sW), TILE))
    a("s_add_u32 %s, %s, %d" % (s(sT0), s(sT0), 4 * TILE))
    a("v_lshlrev_b32 v9, 4, v0")
    a("v_add_u32 v9, %s, v9" % s(sT0))
    a("v_lshrrev_b32 v10, 5, v0")
    a("v_lshlrev_b32 v10, 4, v10")
    a("v_add_u32 v11, 0x%x, v10" % KS_OFF)
    for t in range(16):
        a("ds_read_b128 %s, v9 offset:%d" % (v(64 + 4 * t, 4), t * 1024))
        a("ds_read_b128 %s, v11 offset:%d" % (v(128 + 4 * t, 4), t * 32))
        a("s_waitcnt lgkmcnt(0)")
    for t in range(16):
        a("v_mfma_f32_32x32x16_bf16 v[32:47], %s, %s, %s" % (v(64 + 4 * t, 4), v(128 + 4 * t, 4), "0" if t == 0 else "v[32:47]"))
    a("s_nop 15")
    for r in range(16):
        a("v_add_f32 %s, 0x%x, %s" % (v(32 + r), f2u(1e-6), v(32 + r)))
    for r in range(16):
        a("v_rcp_f32 %s, %s" % (v(32 + r), v(32 + r)))
    a("s_lshl_b32 %s, %s, 7" % (s(sT0), s(sW)))
    a("s_add_u32 %s, %s, 0x%x" % (s(sT0), s(sT0), DEN_OFF))
    a("v_add_u32 v10, %s, v10" % s(sT0))
    for g in range(4):
        a("ds_write_b128 v10, %s offset:%d" % (v(32 + 4 * g, 4), g * 32))
    a("s_waitcnt lgkmcnt(0)")
    a("s_barrier")
    a.label("L_q_end")
    a("s_endpgm")
    return n

a = Asm()
a('.amdgcn_target "amdgcn-amd-amdhsa--gfx950"')
a(".text")
names = [kern_k(a), kern_r(a), kern_q(a)]
a('.section .rodata,"a"')
txt = HEADER
txt += "; @launch kernel=kphase_kernel grid=(256,1,1) block=(512,1,1) lds=%d\n" % LDS_BYTES
txt += "; @launch kernel=reduce_kernel grid=(256,1,1) block=(256,1,1) lds=0\n"
txt += "; @launch kernel=qphase_kernel grid=(256,1,1) block=(512,1,1) lds=%d\n" % LDS_BYTES
txt += a.text()
for n in names:
    txt += ".p2align 6\n" + kernel_desc(n)
open(sys.argv[1], "w").write(txt)
```
